```python
import torch

def _softmax(x, axis=-1):
    return torch.softmax(x, dim=axis)
def _gelu(x):
    return torch.nn.functional.gelu(x, approximate="tanh")
def _silu(x):
    return torch.nn.functional.silu(x)
def _sigmoid(x):
    return torch.sigmoid(x)
def _layernorm(x, axis=-1, eps=1e-5):
    m = x.mean(dim=axis, keepdim=True)
    v = x.var(dim=axis, keepdim=True, unbiased=False)
    return (x - m) / torch.sqrt(v + eps)
def _scatter_add(tgt, idx, src, axis=0):
    return tgt.clone().index_add_(axis, idx, src)
def _segment_sum(src, seg, n):
    out = torch.zeros((n,) + src.shape[1:], dtype=src.dtype)
    return out.index_add_(0, seg, src)
def _pad(x, pw):
    flat = tuple(v for pair in reversed(pw) for v in pair)
    return torch.nn.functional.pad(x, flat)

kernel_name = 'concat_heads__gqa_block_cached__mha_block_cached__near_ridge'

def setup_inputs():

    _w = (lambda a: (lambda t: t.to(torch.bfloat16) if t.is_floating_point() else t)(torch.as_tensor(a)))
    def _A_setup():
        B, Sq, D = 16, 112, 640
        Hq, Hkv, Sk, Dh = 32, 32, 512, 128
        assert Hq % Hkv == 0, (Hq, Hkv)
        return {
            "x": _w((lambda *s: torch.randn(*s, dtype=torch.bfloat16) * 0.8)(B, Sq, D)),
            "k_cache": _w((lambda *s: torch.randn(*s, dtype=torch.bfloat16) * 0.8)(B, Hkv, Sk, Dh)),
            "v_cache": _w((lambda *s: torch.randn(*s, dtype=torch.bfloat16) * 0.05)(B, Hkv, Sk, Dh)),
            "wq": _w((lambda *s: torch.randn(*s, dtype=torch.bfloat16) * 0.8)(D, Hq * Dh) * (D ** -0.5)),
            "wo": _w((lambda *s: torch.randn(*s, dtype=torch.bfloat16) * 0.05)(Hq * Dh, D) * ((Hq * Dh) ** -0.5)),
        }
    _A_in = _A_setup()

    def _B_setup():
        B, Sq, D = 16, 112, 640
        H, Sk, Dh = 32, 512, 128
        return {
            "x": _w((lambda *s: torch.randn(*s, dtype=torch.bfloat16) * 0.8)(B, Sq, D)),
            "k_cache": _w((lambda *s: torch.randn(*s, dtype=torch.bfloat16) * 0.8)(B, H, Sk, Dh)),
            "v_cache": _w((lambda *s: torch.randn(*s, dtype=torch.bfloat16) * 0.05)(B, H, Sk, Dh)),
            "wq": _w((lambda *s: torch.randn(*s, dtype=torch.bfloat16) * 0.8)(D, H * Dh) * (D ** -0.5)),
            "wo": _w((lambda *s: torch.randn(*s, dtype=torch.bfloat16) * 0.05)(H * Dh, D) * ((H * Dh) ** -0.5)),
        }
    _B_in = _B_setup()

    return {
        "A_x": _A_in["x"],
        "A_k_cache": _A_in["k_cache"],
        "A_v_cache": _A_in["v_cache"],
        "A_wq": _A_in["wq"],
        "A_wo": _A_in["wo"],
        "B_x": _B_in["x"],
        "B_k_cache": _B_in["k_cache"],
        "B_v_cache": _B_in["v_cache"],
        "B_wq": _B_in["wq"],
        "B_wo": _B_in["wo"],
    }

def reference(A_x, A_k_cache, A_v_cache, A_wq, A_wo, B_x, B_k_cache, B_v_cache, B_wq, B_wo):
    def _A_ref(x, k_cache, v_cache, wq, wo):
        B, Sq, D = x.shape
        Hq, Dh = 32, 128
        Hkv = k_cache.shape[1]
        rep = Hq // Hkv
        q = (lambda x, *d: x.permute(*d))((x @ wq).reshape(B, Sq, Hq, Dh), 0, 2, 1, 3)
        k = (lambda x, n, axis: torch.repeat_interleave(x, n, dim=axis))(k_cache, rep, axis=1)
        v = (lambda x, n, axis: torch.repeat_interleave(x, n, dim=axis))(v_cache, rep, axis=1)
        scores = torch.einsum("bhqd,bhkd->bhqk", q, k) * (Dh ** -0.5)
        p = _softmax(scores, axis=-1)
        o = torch.einsum("bhqk,bhkd->bhqd", p, v)
        return (lambda x, *d: x.permute(*d))(o, 0, 2, 1, 3).reshape(B, Sq, Hq * Dh) @ wo

    def _B_ref(x, k_cache, v_cache, wq, wo):
        B, Sq, D = x.shape
        H, Dh = 32, 128
        q = (lambda x, *d: x.permute(*d))((x @ wq).reshape(B, Sq, H, Dh), 0, 2, 1, 3)
        scores = torch.einsum("bhqd,bhkd->bhqk", q, k_cache) * (Dh ** -0.5)
        p = _softmax(scores, axis=-1)
        o = torch.einsum("bhqk,bhkd->bhqd", p, v_cache)
        return (lambda x, *d: x.permute(*d))(o, 0, 2, 1, 3).reshape(B, Sq, H * Dh) @ wo

    a = _A_ref(A_x, A_k_cache, A_v_cache, A_wq, A_wo)
    b = _B_ref(B_x, B_k_cache, B_v_cache, B_wq, B_wo)
    return torch.concatenate([a, b], axis=-1)
```

```python
import re

TRANS = ("v_exp_f32", "v_log_f32", "v_rcp_f32", "v_rsq_f32", "v_sqrt_f32", "v_sin_f32", "v_cos_f32")


def regs_of(tok):
    tok = tok.strip()
    tok = tok.lstrip("-")
    m = re.fullmatch(r"abs\((.*)\)", tok)
    if m:
        tok = m.group(1)
    m = re.fullmatch(r"([vsa])\[(\d+):(\d+)\]", tok)
    if m:
        return {(m.group(1), i) for i in range(int(m.group(2)), int(m.group(3)) + 1)}
    m = re.fullmatch(r"([vsa])(\d+)", tok)
    if m:
        return {(m.group(1), int(m.group(2)))}
    if tok == "vcc":
        return {("s", "vcc_lo"), ("s", "vcc_hi")}
    if tok == "m0":
        return {("s", "m0")}
    if tok == "exec":
        return {("s", "exec")}
    return set()


class Ins:
    __slots__ = ("text", "op", "kind", "dst", "src", "srcA", "srcB", "srcC", "states", "is_label")

    def __init__(self, text):
        self.text = text
        t = text.split(";")[0].strip()
        self.is_label = t.endswith(":")
        self.dst = set()
        self.src = set()
        self.srcA = self.srcB = self.srcC = set()
        self.states = 1
        if self.is_label or not t or t.startswith("."):
            self.op = ""
            self.kind = "label" if self.is_label else "none"
            self.states = 0
            return
        parts = t.split(None, 1)
        op = parts[0]
        self.op = op
        ops = []
        if len(parts) > 1:
            ops = [x.strip() for x in re.split(r",(?![^\[]*\])", parts[1])]
            if ops:
                last = ops[-1].split()
                ops[-1] = last[0] if last else ""
        base = re.sub(r"_e(32|64)$|_dpp$", "", op)
        if op.startswith("v_mfma"):
            self.kind = "mfma"
            self.dst = regs_of(ops[0])
            self.srcA, self.srcB, self.srcC = regs_of(ops[1]), regs_of(ops[2]), regs_of(ops[3])
            self.src = self.srcA | self.srcB | self.srcC
        elif op.startswith("v_cmp"):
            self.kind = "valu"
            self.dst = regs_of(ops[0])
            for o in ops[1:]:
                self.src |= regs_of(o)
        elif op.startswith("v_permlane") and "swap" in op:
            self.kind = "permlane"
            self.dst = regs_of(ops[0]) | regs_of(ops[1])
            self.src = set(self.dst)
        elif op.startswith("v_readfirstlane") or op.startswith("v_readlane"):
            self.kind = "readlane"
            self.dst = regs_of(ops[0])
            for o in ops[1:]:
                self.src |= regs_of(o)
        elif op.startswith("v_"):
            self.kind = "trans" if base in TRANS else "valu"
            self.dst = regs_of(ops[0])
            for o in ops[1:]:
                self.src |= regs_of(o)
            if base in ("v_fmac_f32",):
                self.src |= self.dst
            if base.startswith("v_cndmask") and len(ops) == 3:
                self.src |= regs_of("vcc")
            if "_dpp" in op:
                self.kind = "dpp"
        elif op.startswith("ds_read") or op.startswith("ds_bpermute") or op.startswith("ds_swizzle"):
            self.kind = "dsr"
            self.dst = regs_of(ops[0])
            for o in ops[1:]:
                self.src |= regs_of(o)
        elif op.startswith("ds_write"):
            self.kind = "dsw"
            for o in ops:
                self.src |= regs_of(o)
        elif op.startswith("buffer_load") or op.startswith("global_load"):
            lds = t.split()[-1] == "lds"
            self.kind = "dma" if lds else "vload"
            if lds:
                for o in ops:
                    self.src |= regs_of(o)
                self.src |= regs_of("m0")
            else:
                self.dst = regs_of(ops[0])
                for o in ops[1:]:
                    self.src |= regs_of(o)
        elif op.startswith("buffer_store") or op.startswith("global_store"):
            self.kind = "vstore"
            for o in ops:
                self.src |= regs_of(o)
        elif op.startswith("buffer_atomic") or op.startswith("global_atomic"):
            self.kind = "vstore"
            for o in ops:
                self.src |= regs_of(o)
            if " sc0" in t:
                self.dst = regs_of(ops[0])
        elif op.startswith("buffer_inv") or op.startswith("buffer_wbl2"):
            self.kind = "vmisc"
        elif op == "s_nop":
            self.kind = "salu"
            self.states = int(ops[0], 0) + 1
        elif op.startswith("s_"):
            self.kind = "salu"
            nodst = ("s_cmp", "s_cbranch", "s_branch", "s_waitcnt", "s_barrier", "s_setprio", "s_sleep",
                     "s_endpgm", "s_setpc", "s_bitcmp")
            if not any(op.startswith(x) for x in nodst) and ops:
                self.dst = regs_of(ops[0])
                for o in ops[1:]:
                    self.src |= regs_of(o)
            else:
                for o in ops:
                    self.src |= regs_of(o)
        else:
            raise ValueError("unknown op: " + text)

    def is_valu(self):
        return self.kind in ("valu", "trans", "dpp", "permlane", "readlane")


def vset(s):
    return {r for r in s if r[0] in ("v", "a")}


def sset(s):
    return {r for r in s if r[0] == "s"}


def need_states(p, c):
    n = 0
    pv, cv = vset(p.dst), None
    if p.kind == "mfma":
        d = p.dst
        if c.kind == "mfma":
            if d & (c.srcA | c.srcB):
                n = max(n, 8)
            if d & c.srcC and d != c.srcC:
                n = max(n, 6)
            if d & c.dst and d != c.dst and not (d & c.srcC):
                n = max(n, 6)
        else:
            if d & (vset(c.src) | vset(c.dst)):
                n = max(n, 8)
        if c.is_valu() and (p.srcC & vset(c.dst)):
            n = max(n, 3)
    if p.is_valu():
        if c.kind == "mfma" and pv & c.src:
            n = max(n, 2)
        if c.kind == "permlane" and pv & vset(c.src):
            n = max(n, 2)
        if c.kind == "dpp" and pv & vset(c.src):
            n = max(n, 2)
        if c.kind == "readlane" and pv & vset(c.src):
            n = max(n, 1)
        if p.kind == "trans" and c.is_valu() and c.kind != "trans" and pv & vset(c.src):
            n = max(n, 1)
        if p.kind == "trans" and c.kind == "trans" and pv & vset(c.src):
            n = max(n, 1)
        ps = sset(p.dst)
        if ps:
            if c.is_valu() and ps & sset(c.src):
                n = max(n, 2 if c.kind != "readlane" else 4)
            if c.kind in ("dma", "vload", "vstore") and ps & sset(c.src):
                n = max(n, 5)
    if p.kind == "salu" and ("s", "m0") in p.dst and c.kind == "dma":
        n = max(n, 1)
    if p.kind == "vstore" and ("x4" in p.op or "x3" in p.op):
        if vset(p.src) & vset(c.dst) and c.kind not in ("salu",):
            n = max(n, 2)
    return n


class Asm:
    def __init__(self):
        self.ins = []
        self.lg = []
        self.vm = []
        self.nbar = 0

    def __call__(self, text):
        for line in text.split("\n"):
            line = line.rstrip()
            if line.strip():
                self.ins.append(Ins(line.strip()))

    def label(self, name):
        self.ins.append(Ins(name + ":"))

    def comment(self, t):
        i = Ins("")
        i.text = "; " + t
        i.kind = "none"
        i.states = 0
        self.ins.append(i)

    def barrier(self):
        self("s_barrier")
        self.nbar += 1

    def lds(self, text, tag=None):
        assert len(self.lg) < 15, "too many LDS ops in flight"
        self(text)
        self.lg.append(tag)

    def lds_need(self, *tags):
        idx = -1
        for i, t in enumerate(self.lg):
            if t in tags:
                idx = i
        if idx < 0:
            return
        n = len(self.lg) - idx - 1
        self(f"s_waitcnt lgkmcnt({n})")
        self.lg = self.lg[idx + 1:]

    def lds_all(self):
        if self.lg:
            self("s_waitcnt lgkmcnt(0)")
            self.lg = []

    def vmem(self, text, tag=None):
        self(text)
        self.vm.append(tag)
        assert len(self.vm) <= 63, "too many VMEM ops in flight"

    def vm_need(self, pred):
        idx = -1
        for i, t in enumerate(self.vm):
            if pred(t):
                idx = i
        if idx < 0:
            return
        n = len(self.vm) - idx - 1
        self(f"s_waitcnt vmcnt({n})")
        self.vm = self.vm[idx + 1:]

    def vm_all(self):
        if self.vm:
            self("s_waitcnt vmcnt(0)")
            self.vm = []

    def finalize(self):
        out = []
        LOOK = 24
        for c in self.ins:
            if c.kind in ("label", "none"):
                out.append(c)
                continue
            dist = 0
            need = 0
            k = len(out) - 1
            while k >= 0 and dist < LOOK:
                p = out[k]
                if p.kind not in ("label", "none"):
                    r = need_states(p, c)
                    if r > dist:
                        need = max(need, r - dist)
                    dist += p.states
                k -= 1
            while need > 0:
                n = min(need, 8)
                out.append(Ins(f"s_nop {n-1}"))
                need -= n
            out.append(c)
        self.ins = out
        return self

    def text(self):
        lines = []
        for i in self.ins:
            if i.kind == "label":
                lines.append(i.text)
            else:
                lines.append("    " + i.text)
        return "\n".join(lines) + "\n"


def vr(base, n=4):
    return f"v[{base}:{base+n-1}]" if n > 1 else f"v{base}"


def sr(base, n=2):
    return f"s[{base}:{base+n-1}]" if n > 1 else f"s{base}"
```

```python
from asmlib import Asm, vr, sr

KV_SLOT = 16384
NKV = 4
WQ_BASE = 65536
WQ_TILE = 4096
NWQ = 10
QB = WQ_BASE + NWQ * WQ_TILE
XSPARE = QB + 32768
LDS_K1 = XSPARE + 16384

HEAD_O = 28672
SCALE_BITS = 0x3E0293EE
THR_BITS = 0x44800000

S_K, S_V, S_WQ, S_X, S_O = 4, 8, 12, 16, 20
S_WAVE, S_BLK, S_B, S_J, S_W = 24, 25, 26, 27, 28
S_R = 29
S_RET = 30
S_KVB, S_WB, S_T0, S_OOFF, S_SCALE, S_THR = 60, 61, 62, 63, 64, 65
S_M1, S_M2, S_T1, S_T2 = 66, 67, 68, 69


def common_prologue(a, cfg, name):
    a("s_cmp_ge_u32 s2, 256")
    a(f"s_cbranch_scc1 {name}_exit")
    a("s_load_dwordx16 s[32:47], s[0:1], 0")
    a("s_load_dwordx8 s[48:55], s[0:1], 64")
    a("s_load_dwordx2 s[56:57], s[0:1], 96")
    a("v_lshrrev_b32 v1, 6, v0")
    a("v_and_b32 v0, 63, v0")
    a(f"v_readfirstlane_b32 s{S_WAVE}, v1")
    a("s_and_b32 s70, s2, 7")
    a("s_lshr_b32 s71, s2, 3")
    a(f"s_lshr_b32 s{S_BLK}, s70, 2")
    a("s_and_b32 s72, s70, 3")
    m = cfg.get("map", "G")
    if m == "G":
        a(f"s_and_b32 s{S_J}, s71, 7")
        a("s_lshr_b32 s73, s71, 3")
        a("s_lshl_b32 s72, s72, 2")
        a(f"s_add_u32 s{S_B}, s72, s73")
    elif m == "H":
        a("s_and_b32 s73, s71, 1")
        a("s_lshl_b32 s72, s72, 1")
        a(f"s_add_u32 s{S_J}, s72, s73")
        a(f"s_lshr_b32 s{S_B}, s71, 1")
    elif m == "M":
        a("s_and_b32 s73, s72, 1")
        a("s_lshl_b32 s73, s73, 2")
        a("s_and_b32 s74, s71, 3")
        a(f"s_add_u32 s{S_J}, s73, s74")
        a("s_lshr_b32 s72, s72, 1")
        a("s_lshl_b32 s72, s72, 3")
        a("s_lshr_b32 s74, s71, 2")
        a(f"s_add_u32 s{S_B}, s72, s74")
    a("s_waitcnt lgkmcnt(0)")
    a(f"s_cmp_eq_u32 s{S_BLK}, 0")
    a("s_cselect_b64 s[32:33], s[32:33], s[42:43]")
    a("s_cselect_b64 s[34:35], s[34:35], s[44:45]")
    a("s_cselect_b64 s[36:37], s[36:37], s[46:47]")
    a("s_cselect_b64 s[38:39], s[38:39], s[48:49]")
    a("s_cselect_b64 s[40:41], s[40:41], s[50:51]")


def make_srd(a, d, base, off_lo, nbytes, off_hi=None):
    if off_lo is None:
        a(f"s_mov_b32 s{d}, s{base}")
        a(f"s_and_b32 s{d+1}, s{base+1}, 0xffff")
    else:
        a(f"s_add_u32 s{d}, s{base}, s{off_lo}")
        a(f"s_addc_u32 s{d+1}, s{base+1}, 0")
        a(f"s_and_b32 s{d+1}, s{d+1}, 0xffff")
    a(f"s_mov_b32 s{d+2}, {nbytes}")
    a(f"s_mov_b32 s{d+3}, 0x00020000")


class A:
    vK = 8
    vV = 12
    vQ = 20
    vO = 21
    L = 24
    LS = 26
    T = 28
    NM = 40
    PB = 48
    S = 56
    QF = 72
    KF = 104
    VF = 136
    OA = 168
    E = 232

    @staticmethod
    def s(kt, u): return A.S + (kt * 2 + u) * 4
    @staticmethod
    def qf(u, s): return A.QF + (u * 4 + s) * 4
    @staticmethod
    def kf(kt, s): return A.KF + (kt * 4 + s) * 4
    @staticmethod
    def vf(dt): return A.VF + dt * 4
    @staticmethod
    def oa(dt, u): return A.OA + (dt * 2 + u) * 4


def xlane_reduce(a, op, x, tmp):
    a(f"v_mov_b32 v{tmp}, v{x}")
    a(f"v_permlane16_swap_b32 v{x}, v{tmp}")
    a(f"{op} v{x}, v{x}, v{tmp}")
    a(f"v_mov_b32 v{tmp}, v{x}")
    a(f"v_permlane32_swap_b32 v{x}, v{tmp}")
    a(f"{op} v{x}, v{x}, v{tmp}")


def a_max8(a, u, dst):
    s0, s1 = A.s(0, u), A.s(1, u)
    t = A.T + 2
    a(f"v_max3_f32 v{dst}, v{s0}, v{s0+1}, v{s0+2}")
    a(f"v_max3_f32 v{t}, v{s1}, v{s1+1}, v{s1+2}")
    a(f"v_max3_f32 v{dst}, v{dst}, v{s0+3}, v{s1+3}")
    a(f"v_max_f32 v{dst}, v{dst}, v{t}")


def a_exps(a, nq):
    for u in range(nq):
        for kt in range(2):
            for r in range(4):
                a(f"v_exp_f32 v{A.E + u*8 + kt*4 + r}, v{A.s(kt,u)+r}")
    for u in range(nq):
        e = A.E + u * 8
        for i in range(4):
            a(f"v_cvt_pk_bf16_f32 v{A.PB + u*4 + i}, v{e+2*i}, v{e+2*i+1}")
    for u in range(nq):
        e = A.E + u * 8
        for i in range(4):
            a(f"v_add_f32 v{e+2*i}, v{e+2*i}, v{e+2*i+1}")
    for u in range(nq):
        e = A.E + u * 8
        a(f"v_add_f32 v{e}, v{e}, v{e+2}")
        a(f"v_add_f32 v{e+4}, v{e+4}, v{e+6}")
    for u in range(nq):
        e = A.E + u * 8
        a(f"v_add_f32 v{A.LS+u}, v{e}, v{e+4}")


def a_slow(a, nq, name):
    a.label(name)
    a("s_nop 7")
    for u in range(nq):
        d = A.T + u
        a_max8(a, u, d)
        xlane_reduce(a, "v_max_f32", d, A.T + 2)
        a(f"v_max_f32 v{d}, 0, v{d}")
        a(f"v_sub_f32 v{A.T+2}, 0, v{d}")
        a(f"v_exp_f32 v{A.T+3}, v{A.T+2}")
        for i in range(4):
            a(f"v_sub_f32 v{A.NM+u*4+i}, v{A.NM+u*4+i}, v{d}")
        for kt in range(2):
            for r in range(4):
                a(f"v_sub_f32 v{A.s(kt,u)+r}, v{A.s(kt,u)+r}, v{d}")
        a(f"v_mul_f32 v{A.L+u}, v{A.L+u}, v{A.T+3}")
        for dt in range(8):
            for r in range(4):
                a(f"v_mul_f32 v{A.oa(dt,u)+r}, v{A.oa(dt,u)+r}, v{A.T+3}")
    a_exps(a, nq)
    a("s_nop 7")
    a(f"s_setpc_b64 {sr(S_RET)}")


def a_step(a, j, nq, slowname, uid):
    first = (j == 0)
    a.barrier()
    ko = (j % NKV) * KV_SLOT
    vo = ko + 8192
    if first:
        for u in range(nq):
            for s in range(4):
                a.lds(f"ds_read_b128 {vr(A.qf(u,s))}, v{A.vQ} offset:{u*4096+s*1024}", "Q")
        a.lds_all()
    for kt in range(2):
        for s in range(4):
            a.lds(f"ds_read_b128 {vr(A.kf(kt,s))}, v{A.vK+s} offset:{ko+kt*4096}", ("K", kt, s))
    vq = [(dt, hh) for dt in range(8) for hh in range(2)]

    def vreads(n):
        for _ in range(n):
            if vq and len(a.lg) < 15:
                dt, hh = vq.pop(0)
                a.lds(f"ds_read_b64_tr_b16 {vr(A.vf(dt)+2*hh,2)}, v{A.vV+dt} offset:{vo+hh*4096}", ("V", dt))
    vreads(6)
    for kt in range(2):
        for s in range(4):
            a.lds_need(("K", kt, s))
            for u in range(nq):
                c = ("0" if first else vr(A.NM + u * 4)) if s == 0 else vr(A.s(kt, u))
                a(f"v_mfma_f32_16x16x32_bf16 {vr(A.s(kt,u))}, {vr(A.kf(kt,s))}, {vr(A.qf(u,s))}, {c}")
            vreads(2)
    vreads(16)
    assert not vq or True
    if first:
        for u in range(nq):
            d = A.T + u
            a_max8(a, u, d)
            xlane_reduce(a, "v_max_f32", d, A.T + 2)
            for i in range(4):
                a(f"v_sub_f32 v{A.NM+u*4+i}, 0, v{d}")
            for kt in range(2):
                for r in range(4):
                    a(f"v_sub_f32 v{A.s(kt,u)+r}, v{A.s(kt,u)+r}, v{d}")
    a_exps(a, nq)
    if first:
        for u in range(nq):
            a(f"v_mov_b32 v{A.L+u}, v{A.LS+u}")
    else:
        if nq == 2:
            a(f"v_max_f32 v{A.T}, v{A.LS}, v{A.LS+1}")
            a(f"v_cmp_lt_f32 vcc, s{S_THR}, v{A.T}")
        else:
            a(f"v_cmp_lt_f32 vcc, s{S_THR}, v{A.LS}")
        a("s_nop 1")
        a(f"s_cbranch_vccz {uid}_ok{j}")
        a(f"s_call_b64 {sr(S_RET)}, {slowname}")
        a.label(f"{uid}_ok{j}")
        for u in range(nq):
            a(f"v_add_f32 v{A.L+u}, v{A.L+u}, v{A.LS+u}")
    while vq:
        a.lds_need(a.lg[0])
        vreads(16)
    for dt in range(8):
        a.lds_need(("V", dt))
        for u in range(nq):
            c = "0" if first else vr(A.oa(dt, u))
            a(f"v_mfma_f32_16x16x32_bf16 {vr(A.oa(dt,u))}, {vr(A.vf(dt))}, {vr(A.PB+u*4)}, {c}")
    assert not a.lg


def a_epilogue(a, nq, uid, cfg):
    a.comment("---- A epilogue: normalise and store O")
    st = cfg.get("ostore", "")
    for u in range(nq):
        xlane_reduce(a, "v_add_f32", A.L + u, A.T + 2)
        a(f"v_rcp_f32 v{A.L+u}, v{A.L+u}")
    for u in range(nq):
        if u == 1:
            a(f"s_cmp_eq_u32 s{S_W}, 3")
            a(f"s_cbranch_scc1 {uid}_nost")
        for s in range(4):
            e = A.E + (s % 4) * 4
            for h in range(2):
                o = A.oa(2 * s + h, u)
                for r in range(4):
                    a(f"v_mul_f32 v{o+r}, v{o+r}, v{A.L+u}")
                a(f"v_cvt_pk_bf16_f32 v{e+2*h}, v{o}, v{o+1}")
                a(f"v_cvt_pk_bf16_f32 v{e+2*h+1}, v{o+2}, v{o+3}")
            a(f"buffer_store_dwordx4 {vr(e)}, v{A.vO+u}, {sr(S_O,4)}, s{S_OOFF} offen offset:{s*1024}{st}")
    a.label(f"{uid}_nost")
    a("s_nop 1")


def role_a(a, cfg, npro, name):
    nq = 2
    uid = name + "_a"
    a.label(uid)
    a(f"s_setprio {cfg.get('prioA', 2)}")
    a(f"s_mov_b32 s{S_W}, s{S_WAVE}")
    a(f"s_lshl_b32 s70, s{S_BLK}, 4")
    a(f"s_add_u32 s70, s70, s{S_B}")
    a("s_lshl_b32 s70, s70, 5")
    a(f"s_lshl_b32 s71, s{S_J}, 2")
    a("s_add_u32 s70, s70, s71")
    a(f"s_mul_i32 s70, s70, {HEAD_O}")
    make_srd(a, S_O, 56, 70, 4 * HEAD_O)
    a(f"s_mov_b32 s{S_THR}, {THR_BITS}")
    a("v_and_b32 v1, 15, v0")
    a("v_lshrrev_b32 v2, 4, v0")
    for s in range(4):
        a(f"v_add_u32 v3, {4*s}, v2")
        a("v_xor_b32 v3, v3, v1")
        a("v_lshlrev_b32 v3, 4, v3")
        a(f"v_lshl_add_u32 v{A.vK+s}, v1, 8, v3")
    a("v_bfe_u32 v3, v0, 2, 2")
    a("v_lshl_add_u32 v3, v2, 2, v3")
    a("v_and_b32 v4, 3, v0")
    a("v_lshlrev_b32 v4, 3, v4")
    a("v_lshl_add_u32 v4, v3, 8, v4")
    a("v_and_b32 v5, 7, v3")
    for dt in range(8):
        a(f"v_xor_b32 v6, {dt}, v5")
        a(f"v_lshl_add_u32 v{A.vV+dt}, v6, 5, v4")
    a(f"s_lshl_b32 s70, s{S_W}, 13")
    a("v_lshlrev_b32 v3, 4, v0")
    a(f"v_add_u32 v{A.vO}, s70, v3")
    a(f"v_add_u32 v{A.vO+1}, 4096, v{A.vO}")
    a(f"v_add_u32 v{A.vQ}, {QB}, v{A.vO}")
    a(f"s_mov_b32 s{S_R}, 0")
    a(f"s_mov_b32 s{S_OOFF}, 0")
    for _ in range(npro):
        a.barrier()
    a.label(uid + "_loop")
    nb0 = a.nbar
    for j in range(16):
        a_step(a, j, nq, uid + "_slow", uid)
    a_epilogue(a, nq, uid, cfg)
    a(f"s_add_u32 s{S_OOFF}, s{S_OOFF}, {HEAD_O}")
    a(f"s_add_u32 s{S_R}, s{S_R}, 1")
    a(f"s_cmp_lt_u32 s{S_R}, 4")
    a(f"s_cbranch_scc1 {uid}_loop")
    a.nbar += 3 * (a.nbar - nb0)
    a("s_endpgm")
    a_slow(a, nq, uid + "_slow")


class P:
    vWr = 8
    vWd = 12
    vKd = 13
    vVd = 15
    vQw = 17
    vXd = [18, 19, 22, 23]
    vXr = 20
    T = 24
    WF = 32
    QA = 64
    XF = 96

    @staticmethod
    def wf(buf, t): return P.WF + (buf * 4 + t) * 4
    @staticmethod
    def qa(t, u): return P.QA + (t * 2 + u) * 4
    @staticmethod
    def xf(u, kk): return P.XF + (u * 20 + kk) * 4


def plan_steps(cfg):
    steps = []
    pro = cfg.get("pro_tiles", [5, 5, 5, 5, 5, 5, 3, 2, 3, 2])
    assert sum(pro) == 40
    g = 0
    for n, c in enumerate(pro):
        steps.append(dict(slot=-1, j=n, tiles=list(range(g, g + c)), kv=None))
        g += c
    for r in range(4):
        for j in range(16):
            c = (3 if j % 2 == 0 else 2) if r < 3 else 0
            steps.append(dict(slot=r, j=j, tiles=list(range(g, g + c)), kv=16 * r + j))
            g += c
    return steps


def p_dma_wq(a, g, slot, flag):
    hq, tt = divmod(g, 40)
    ps, kk = divmod(tt, 20)
    rel = hq - (slot + 1)
    assert rel in (0, 1), (g, slot)
    off = rel * 256 + ps * 128 + kk * 262144
    a(f"s_add_u32 m0, s{S_M2}, {(g % NWQ) * WQ_TILE}")
    a(f"s_add_u32 s{S_T0}, s{S_WB}, {off}")
    a.vmem(f"buffer_load_dwordx4 v{P.vWd}, {sr(S_WQ,4)}, s{S_T0} offen{flag} lds", ("W", g))


def p_dma_kv(a, T, slot, flag):
    rel = T - 16 * slot
    ko = (T % NKV) * KV_SLOT
    a(f"s_add_u32 s{S_T0}, s{S_KVB}, {rel*8192}")
    a(f"s_add_u32 m0, s{S_M1}, {ko}")
    a("s_nop 0")
    a.vmem(f"buffer_load_dwordx4 v{P.vKd}, {sr(S_K,4)}, s{S_T0} offen{flag} lds", ("KV", T))
    a.vmem(f"buffer_load_dwordx4 v{P.vKd+1}, {sr(S_K,4)}, s{S_T0} offen offset:1024{flag} lds", ("KV", T))
    a(f"s_add_u32 m0, s{S_M1}, {ko+8192}")
    a("s_nop 0")
    a.vmem(f"buffer_load_dwordx4 v{P.vVd}, {sr(S_V,4)}, s{S_T0} offen{flag} lds", ("KV", T))
    a.vmem(f"buffer_load_dwordx4 v{P.vVd+1}, {sr(S_V,4)}, s{S_T0} offen offset:1024{flag} lds", ("KV", T))


def p_write_q(a, ps):
    for u in range(2):
        for t in range(4):
            q = P.qa(t, u)
            T = 4 * ps + t
            e = P.T + (t % 2) * 2
            for r in range(4):
                a(f"v_mul_f32 v{q+r}, s{S_SCALE}, v{q+r}")
            a(f"v_cvt_pk_bf16_f32 v{e}, v{q}, v{q+1}")
            a(f"v_cvt_pk_bf16_f32 v{e+1}, v{q+2}, v{q+3}")
            if len(a.lg) >= 14:
                a.lds_all()
            a.lds(f"ds_write_b64 v{P.vQw}, {vr(e,2)} offset:{u*4096 + (T>>1)*1024 + (T&1)*512}", "QW")
            if t % 2 == 1:
                a.lds_all()


def p_tile_reads(a, g, buf):
    ro = (g % NWQ) * WQ_TILE
    for t in range(4):
        for hh in range(2):
            a.lds(f"ds_read_b64_tr_b16 {vr(P.wf(buf,t)+2*hh,2)}, v{P.vWr+t} offset:{ro+hh*512}", ("WF", g, t))


def p_tile_mfma(a, g, buf):
    tt = g % 40
    kk = tt % 20
    for t in range(4):
        a.lds_need(("WF", g, t))
        for u in range(2):
            c = "0" if kk == 0 else vr(P.qa(t, u))
            a(f"v_mfma_f32_16x16x32_bf16 {vr(P.qa(t,u))}, {vr(P.wf(buf,t))}, {vr(P.xf(u,kk))}, {c}")


def p_step(a, steps, n, st, cfg):
    s = steps[n]
    slot = s["slot"]
    a.barrier()
    tiles = s["tiles"]
    if tiles:
        p_tile_reads(a, tiles[0], 0)
        for i, g in enumerate(tiles):
            if g % 40 == 20:
                p_write_q(a, 0)
            if i + 1 < len(tiles):
                a.lds_need(("WF", g, 0))
                p_tile_reads(a, tiles[i + 1], (i + 1) % 2)
            p_tile_mfma(a, g, i % 2)
    wflag, kflag = cfg.get("wq_flag", ""), cfg.get("kv_flag", " nt")
    consumed_before = [g for m in range(n) for g in steps[m]["tiles"]]
    last_w = max(consumed_before) if consumed_before else -1
    while st["w"] < st["wmax"] and st["w"] - NWQ <= last_w:
        p_dma_wq(a, st["w"], slot, wflag)
        st["w"] += 1
    kv_before = [steps[m]["kv"] for m in range(n) if steps[m]["kv"] is not None]
    last_kv = max(kv_before) if kv_before else -1
    kv_allowed = True
    if slot == -1:
        kv_allowed = (len([x for x in steps if x["slot"] == -1]) - s["j"]) <= cfg.get("kv_pro", 3)
    lim = 1 if slot == -1 else 99
    cnt = 0
    while kv_allowed and st["kv"] < 64 and st["kv"] - NKV <= last_kv and cnt < lim and (slot != -1 or st["kv"] < cfg.get("kv_pro", 3)):
        p_dma_kv(a, st["kv"], slot, kflag)
        st["kv"] += 1
        cnt += 1
    if tiles and tiles[-1] % 40 == 39:
        p_write_q(a, 1)
        a.lds_all()
    assert not a.lg, a.lg
    if n + 1 < len(steps):
        nx = steps[n + 1]
        need_w = set(nx["tiles"])
        need_kv = nx["kv"]
        for g in need_w:
            assert g < st["w"], ("wq tile not issued in time", g, n)
        if need_kv is not None:
            assert need_kv < st["kv"], ("kv tile not issued in time", need_kv, n)
        a.vm_need(lambda t: (t[0] == "W" and t[1] in need_w) or (t[0] == "KV" and t[1] == need_kv))


def role_p(a, cfg, name):
    uid = name + "_p"
    a.label(uid)
    a(f"s_setprio {cfg.get('prioP', 0)}")
    a(f"s_sub_u32 s{S_W}, s{S_WAVE}, 4")
    a(f"s_lshl_b32 s70, s{S_B}, 5")
    a(f"s_lshl_b32 s71, s{S_J}, 2")
    a("s_add_u32 s70, s70, s71")
    a("s_lshl_b32 s70, s70, 17")
    make_srd(a, S_K, 34, 70, 524288)
    make_srd(a, S_V, 36, 70, 524288)
    make_srd(a, S_WQ, 38, None, 5242880)
    a(f"s_mul_i32 s70, s{S_B}, 143360")
    make_srd(a, S_X, 32, 70, 143360)
    a(f"s_mov_b32 s{S_SCALE}, {SCALE_BITS}")
    a(f"s_lshl_b32 s{S_M1}, s{S_W}, 11")
    a(f"s_lshl_b32 s{S_M2}, s{S_W}, 10")
    a(f"s_add_u32 s{S_M2}, s{S_M2}, {WQ_BASE}")
    a(f"s_lshl_b32 s{S_WB}, s{S_J}, 10")
    a(f"s_mov_b32 s{S_KVB}, {(-16*8192) & 0xffffffff}")
    a("v_lshrrev_b32 v1, 4, v0")
    a("v_bfe_u32 v2, v0, 2, 2")
    a("v_and_b32 v3, 3, v0")
    a("v_lshl_add_u32 v4, v1, 3, v2")
    a("v_lshlrev_b32 v4, 7, v4")
    a("v_lshl_add_u32 v4, v3, 3, v4")
    a(f"v_add_u32 v4, {WQ_BASE}, v4")
    a("v_lshrrev_b32 v5, 1, v2")
    a("v_and_b32 v6, 1, v1")
    a("v_lshl_or_b32 v5, v6, 1, v5")
    for t in range(4):
        a(f"v_xor_b32 v6, {t}, v5")
        a(f"v_lshl_add_u32 v{P.vWr+t}, v6, 5, v4")
    a("v_lshrrev_b32 v4, 3, v0")
    a(f"s_lshl_b32 s70, s{S_W}, 3")
    a("v_add_u32 v4, s70, v4")
    a("v_lshlrev_b32 v4, 13, v4")
    a("v_and_b32 v5, 1, v1")
    a(f"s_and_b32 s70, s{S_W}, 1")
    a("s_lshl_b32 s70, s70, 1")
    a("v_or_b32 v5, s70, v5")
    a("v_lshlrev_b32 v5, 1, v5")
    a("v_and_b32 v6, 7, v0")
    a("v_xor_b32 v6, v6, v5")
    a(f"v_lshl_add_u32 v{P.vWd}, v6, 4, v4")
    a(f"s_lshl_b32 s70, s{S_W}, 3")
    a("v_add_u32 v4, s70, v1")
    a("v_and_b32 v5, 15, v0")
    for i in range(2):
        a(f"v_add_u32 v6, {4*i}, v4")
        a("v_and_b32 v7, 15, v6")
        a("v_xor_b32 v7, v7, v5")
        a("v_lshlrev_b32 v7, 4, v7")
        a(f"v_lshl_add_u32 v{P.vKd+i}, v4, 8, v7")
        a("v_and_b32 v7, 7, v6")
        a("v_lshlrev_b32 v7, 1, v7")
        a("v_xor_b32 v7, v7, v5")
        a("v_lshlrev_b32 v7, 4, v7")
        a(f"v_lshl_add_u32 v{P.vVd+i}, v4, 8, v7")
    a("v_lshrrev_b32 v4, 1, v1")
    a("v_lshl_add_u32 v4, v4, 4, v5")
    a("v_lshlrev_b32 v4, 4, v4")
    a("v_and_b32 v6, 1, v1")
    a("v_lshl_add_u32 v4, v6, 3, v4")
    a(f"s_lshl_b32 s70, s{S_W}, 13")
    a(f"s_add_u32 s70, s70, {QB}")
    a(f"v_add_u32 v{P.vQw}, s70, v4")
    a("v_lshrrev_b32 v4, 3, v0")
    a(f"s_lshl_b32 s70, s{S_W}, 5")
    a("v_add_u32 v4, s70, v4")
    a("v_and_b32 v6, 7, v0")
    for n in range(4):
        a(f"v_add_u32 v7, {4*(n&1)}, v1")
        a("v_xor_b32 v7, v7, v6")
        a("v_lshlrev_b32 v7, 4, v7")
        a(f"v_add_u32 v2, {8*n}, v4")
        a("v_mul_u32_u24 v2, 1280, v2")
        a(f"v_add_u32 v{P.vXd[n]}, v2, v7")
    a("v_lshrrev_b32 v6, 1, v5")
    for ks in range(2):
        a(f"v_add_u32 v7, {4*ks}, v1")
        a("v_xor_b32 v7, v7, v6")
        a("v_lshlrev_b32 v7, 4, v7")
        a(f"v_lshl_add_u32 v{P.vXr+ks}, v5, 7, v7")

    steps = plan_steps(cfg)
    st = dict(w=0, kv=0, wmax=170)
    xflag = cfg.get("x_flag", "")
    a(f"s_lshl_b32 s71, s{S_W}, 13")
    a("s_add_u32 s71, s71, 32768")
    a("s_add_u32 s72, s71, 4096")
    a(f"s_lshl_b32 s73, s{S_W}, 12")
    a(f"s_add_u32 s73, s73, {XSPARE}")
    for k in range(3):
        for ks in range(2):
            a(f"v_add_u32 v{P.T + 2*k + ks}, s{71+k}, v{P.vXr+ks}")

    def x_issue(c):
        k = c % 3
        for n in range(4):
            a(f"s_add_u32 m0, s{71+k}, {n*1024}")
            a(f"s_mov_b32 s{S_T0}, {c*128}")
            a.vmem(f"buffer_load_dwordx4 v{P.vXd[n]}, {sr(S_X,4)}, s{S_T0} offen{xflag} lds", ("X", c))
    for c in range(3):
        x_issue(c)
    while st["w"] < NWQ:
        p_dma_wq(a, st["w"], -1, cfg.get("wq_flag", ""))
        st["w"] += 1
    for c in range(10):
        k = c % 3
        a.vm_need(lambda t: t == ("X", c))
        for u in range(2):
            for ks in range(2):
                a.lds(f"ds_read_b128 {vr(P.xf(u, 2*c+ks))}, v{P.T + 2*k + ks} offset:{u*2048}", "XR")
        a.lds_all()
        if c + 3 < 10:
            x_issue(c + 3)
    need0 = set(steps[0]["tiles"])
    a.vm_need(lambda t: t[0] == "W" and t[1] in need0)

    npro = len([s for s in steps if s["slot"] == -1])
    for n in range(npro):
        p_step(a, steps, n, st, cfg)
    bodies = []
    entry_vm = list(a.vm)
    for r in range(3):
        b = Asm()
        b.vm = list(a.vm)
        for n in range(npro + 16 * r, npro + 16 * (r + 1)):
            p_step(b, steps, n, st, cfg)
        a.vm = list(b.vm)
        bodies.append(b)
    import re
    def norm(b):
        return [re.sub(r"^; ---- P step.*", "", i.text) for i in b.ins]
    assert norm(bodies[0]) == norm(bodies[1]) == norm(bodies[2]), "slot code differs"
    a(f"s_mov_b32 s{S_R}, 0")
    a(f"s_add_u32 s{S_KVB}, s{S_KVB}, {16*8192}")
    a(f"s_add_u32 s{S_WB}, s{S_WB}, 256")
    a.label(uid + "_loop")
    a.ins.extend(bodies[0].ins)
    a.nbar += 3 * bodies[0].nbar
    a(f"s_add_u32 s{S_KVB}, s{S_KVB}, {16*8192}")
    a(f"s_add_u32 s{S_WB}, s{S_WB}, 256")
    a(f"s_add_u32 s{S_R}, s{S_R}, 1")
    a(f"s_cmp_lt_u32 s{S_R}, 3")
    a(f"s_cbranch_scc1 {uid}_loop")
    st["wmax"] = st["w"]
    for n in range(npro + 48, npro + 64):
        p_step(a, steps, n, st, cfg)
    a("s_waitcnt vmcnt(0)")
    a("s_endpgm")
    return npro


def gen_k1(name, cfg):
    a = Asm()
    a.label(name)
    common_prologue(a, cfg, name)
    a(f"s_cmp_ge_u32 s{S_WAVE}, 4")
    a(f"s_cbranch_scc1 {name}_p")
    steps = plan_steps(cfg)
    npro = len([s for s in steps if s["slot"] == -1])
    aa = Asm()
    role_a(aa, cfg, npro, name)
    pp = Asm()
    role_p(pp, cfg, name)
    assert aa.nbar == pp.nbar, (aa.nbar, pp.nbar)
    aa.finalize()
    pp.finalize()
    a.finalize()
    tail = Asm()
    tail.label(name + "_exit")
    tail("s_endpgm")
    return a.text() + aa.text() + pp.text() + tail.text()
```

```python
from asmlib import Asm, vr, sr
from k1 import common_prologue, make_srd, HEAD_O, S_WAVE, S_BLK, S_B, S_J, S_W

TILE = 20480
NS = 3
RING = NS * TILE
LDS_K2 = 2 * RING

S_WO, S_OI, S_OUT = 4, 8, 12
S_KH, S_T0, S_M, S_HB, S_OB, S_OUTOFF = 29, 62, 63, 64, 65, 66

vWd = 8
vAr = 13
vB = 14
vOut = 16
vRed = 18
T = 20
ACC = 32
AF = 72
BF = 112


def acc(nt, u): return ACC + (nt * 2 + u) * 4
def af(buf, nt): return AF + (buf * 5 + nt) * 4
def bf(st, u, s): return BF + (st * 8 + u * 4 + s) * 4


def gen_k2(name, cfg):
    a = Asm()
    a.label(name)
    common_prologue(a, dict(map="G"), name)
    a(f"s_and_b32 s{S_W}, s{S_WAVE}, 3")
    a(f"s_lshr_b32 s{S_KH}, s{S_WAVE}, 2")
    make_srd(a, S_WO, 40, None, 5242880)
    a(f"s_lshl_b32 s70, s{S_BLK}, 4")
    a(f"s_add_u32 s70, s70, s{S_B}")
    a(f"s_mul_i32 s70, s70, {32*HEAD_O}")
    make_srd(a, S_OI, 56, 70, 32 * HEAD_O + 4096)
    make_srd(a, S_OUT, 52, None, 16 * 112 * 2560)
    a(f"s_mul_i32 s{S_HB}, s{S_KH}, {16*128*1280}")
    a(f"s_mul_i32 s70, s{S_J}, 160")
    a(f"s_add_u32 s{S_HB}, s{S_HB}, s70")
    a(f"s_mul_i32 s{S_OB}, s{S_KH}, {16*HEAD_O}")
    a(f"s_mul_i32 s{S_M}, s{S_KH}, {RING}")
    a(f"s_mul_i32 s71, s{S_W}, 5120")
    a(f"s_add_u32 s{S_M}, s{S_M}, s71")
    a(f"s_mul_i32 s{S_OUTOFF}, s{S_B}, {112*2560}")
    a(f"s_mul_i32 s71, s{S_BLK}, 1280")
    a(f"s_add_u32 s{S_OUTOFF}, s{S_OUTOFF}, s71")
    a(f"s_add_u32 s{S_OUTOFF}, s{S_OUTOFF}, s70")
    a(f"s_lshl_b32 s71, s{S_W}, 5")
    a("s_mov_b32 s72, 6554")
    for n in range(5):
        a(f"v_add_u32 v1, {64*n}, v0")
        a("v_mul_lo_u32 v2, v1, s72")
        a("v_lshrrev_b32 v2, 16, v2")
        a("v_mul_u32_u24 v3, 10, v2")
        a("v_sub_u32 v3, v1, v3")
        a("v_add_u32 v2, s71, v2")
        a("v_mul_u32_u24 v2, 1280, v2")
        a(f"v_lshl_add_u32 v{vWd+n}, v3, 4, v2")
    a("v_lshrrev_b32 v1, 4, v0")
    a("v_bfe_u32 v2, v0, 2, 2")
    a("v_lshl_add_u32 v2, v1, 2, v2")
    a("v_mul_u32_u24 v2, 160, v2")
    a("v_and_b32 v3, 3, v0")
    a("v_lshl_add_u32 v2, v3, 3, v2")
    a(f"s_mul_i32 s71, s{S_KH}, {RING}")
    a(f"v_add_u32 v{vAr}, s71, v2")
    a(f"s_lshl_b32 s71, s{S_W}, 13")
    a("v_lshlrev_b32 v2, 4, v0")
    a(f"v_add_u32 v{vB}, s71, v2")
    a(f"v_add_u32 v{vB+1}, 4096, v{vB}")
    a(f"s_mul_i32 s71, s{S_W}, 10240")
    a(f"v_add_u32 v{vRed}, s71, v2")
    a("v_and_b32 v2, 15, v0")
    a(f"s_lshl_b32 s71, s{S_W}, 5")
    a("v_add_u32 v2, s71, v2")
    a("v_mul_u32_u24 v2, 2560, v2")
    a(f"v_lshl_add_u32 v{vOut}, v1, 3, v2")
    a(f"v_add_u32 v{vOut+1}, {16*2560}, v{vOut}")

    wf, of = cfg.get("wo_flag", ""), cfg.get("o_flag", "")

    def issue(h):
        sl = h % NS
        a(f"s_add_u32 s{S_T0}, s{S_HB}, {h*128*1280}")
        for n in range(5):
            a(f"s_add_u32 m0, s{S_M}, {sl*TILE + n*1024}")
            a("s_nop 0")
            a.vmem(f"buffer_load_dwordx4 v{vWd+n}, {sr(S_WO,4)}, s{S_T0} offen{wf} lds", ("W", h))
        a(f"s_add_u32 s{S_T0}, s{S_OB}, {h*HEAD_O}")
        for u in range(2):
            for s in range(4):
                a.vmem(f"buffer_load_dwordx4 {vr(bf(sl,u,s))}, v{vB+u}, {sr(S_OI,4)}, s{S_T0} offen offset:{s*1024}{of}", ("B", h))

    issue(0)
    issue(1)
    a.vm_need(lambda t: t[1] == 0)
    for h in range(16):
        a.comment(f"---- K2 step {h}")
        a.barrier()
        sl = h % NS

        def reads(s, buf):
            for nt in range(5):
                for hh in range(2):
                    a.lds(f"ds_read_b64_tr_b16 {vr(af(buf,nt)+2*hh,2)}, v{vAr} offset:{sl*TILE + s*5120 + hh*2560 + nt*32}", ("A", s, nt))
        reads(0, 0)
        if h + 2 < 16:
            issue(h + 2)
        for s in range(4):
            nxt = []
            for nt in range(5):
                a.lds_need(("A", s, nt))
                if s + 1 < 4:
                    for hh in range(2):
                        a.lds(f"ds_read_b64_tr_b16 {vr(af((s+1)%2,nt)+2*hh,2)}, v{vAr} offset:{sl*TILE + (s+1)*5120 + hh*2560 + nt*32}", ("A", s + 1, nt))
                for u in range(2):
                    c = "0" if (h == 0 and s == 0) else vr(acc(nt, u))
                    a(f"v_mfma_f32_16x16x32_bf16 {vr(acc(nt,u))}, {vr(af(s%2,nt))}, {vr(bf(sl,u,s))}, {c}")
        assert not a.lg
        if h + 1 < 16:
            a.vm_need(lambda t: t[1] == h + 1)
    a.barrier()
    a(f"s_cmp_eq_u32 s{S_KH}, 0")
    a(f"s_cbranch_scc1 {name}_lo")
    a("s_nop 7")
    for i in range(10):
        a.lds(f"ds_write_b128 v{vRed}, {vr(ACC+4*i)} offset:{i*1024}", "R")
    a.lds_all()
    a("s_barrier")
    a("s_endpgm")
    a.label(name + "_lo")
    a("s_barrier")
    a.nbar += 1
    for i in range(10):
        a.lds(f"ds_read_b128 {vr(BF+4*i)}, v{vRed} offset:{i*1024}", ("R", i))
    of2 = cfg.get("out_flag", "")
    for u in range(2):
        if u == 1:
            a(f"s_cmp_eq_u32 s{S_W}, 3")
            a(f"s_cbranch_scc1 {name}_exit")
        for nt in range(5):
            i = nt * 2 + u
            a.lds_need(("R", i))
            for r in range(4):
                a(f"v_add_f32 v{acc(nt,u)+r}, v{acc(nt,u)+r}, v{BF+4*i+r}")
            e = T + 2 * (nt % 4)
            a(f"v_cvt_pk_bf16_f32 v{e}, v{acc(nt,u)}, v{acc(nt,u)+1}")
            a(f"v_cvt_pk_bf16_f32 v{e+1}, v{acc(nt,u)+2}, v{acc(nt,u)+3}")
            a(f"buffer_store_dwordx2 {vr(e,2)}, v{vOut+u}, {sr(S_OUT,4)}, s{S_OUTOFF} offen offset:{nt*32}{of2}")
    a.lg = []
    a.label(name + "_exit")
    a("s_endpgm")
    a.finalize()
    return a.text()
```

```python
import sys, struct, math, json, os
sys.path.insert(0, os.path.dirname(os.path.abspath(__file__)))
import k1, k2
NAME = "concat_heads__gqa_block_cached__mha_block_cached__near_ridge"
REF = "cdna_kernels/" + NAME + ".s.ref"

def header():
    lines = []
    for l in open(REF).read().split("\n"):
        if l.startswith("; @launch"): break
        if l.startswith("; Override") or l.startswith("; grid="): continue
        lines.append(l)
    return lines

def desc(name, vgpr, sgpr=96):
    acc = min(256, (vgpr + 3) // 4 * 4)
    return f""".amdhsa_kernel {name}
  .amdhsa_next_free_vgpr {vgpr}
  .amdhsa_next_free_sgpr {sgpr}
  .amdhsa_accum_offset {acc}
  .amdhsa_group_segment_fixed_size 0
  .amdhsa_kernarg_size 104
  .amdhsa_user_sgpr_count 2
  .amdhsa_user_sgpr_kernarg_segment_ptr 1
  .amdhsa_system_sgpr_workgroup_id_x 1
  .amdhsa_float_denorm_mode_32 3
.end_amdhsa_kernel
"""

def build(cfg, path):
    assert struct.unpack("<I", struct.pack("<f", math.log2(math.e) / math.sqrt(128)))[0] == k1.SCALE_BITS, hex(struct.unpack("<I", struct.pack("<f", math.log2(math.e) / math.sqrt(128)))[0])
    n1 = NAME + "_kernel"; n2 = "oproj_kernel"
    kernels = []
    if cfg.get("k1", True): kernels.append((n1, k1.gen_k1(n1, cfg), k1.LDS_K1, 256))
    if cfg.get("k2", True): kernels.append((n2, k2.gen_k2(n2, cfg), k2.LDS_K2, 256))
    out = header()
    for n, _, lds, _ in kernels:
        out.append(f"; @launch kernel={n} grid=(256,1,1) block=(512,1,1) lds={lds}")
    out.append('.amdgcn_target "amdgcn-amd-amdhsa--gfx950"')
    out.append(".text")
    for n, code, _, _ in kernels:
        out.append(f".globl {n}\n.p2align 8\n.type {n},@function")
        out.append(code)
    out.append('.section .rodata,"a"')
    for n, _, _, v in kernels:
        out.append(".p2align 6")
        out.append(desc(n, v))
    open(path, "w").write("\n".join(out))

if __name__ == "__main__":
    cfg = json.loads(sys.argv[2]) if len(sys.argv) > 2 else {}
    path = sys.argv[1] if len(sys.argv) > 1 else "cdna_kernels/" + NAME + ".s"
    build(cfg, path)
    print("wrote", path, os.path.getsize(path))
```

```python
import subprocess, os
LLVM="bin"
def wrap(name, body, nargs, vgpr=128, sgpr=96, accum=None, wg=256):
    accum = accum or min(256, (vgpr+3)//4*4)
    args="\n".join(f"      - {{.name: p{i}, .size: 8, .offset: {8*i}, .value_kind: global_buffer, .address_space: global}}" for i in range(nargs))
    return f""".amdgcn_target "amdgcn-amd-amdhsa--gfx950"
.text
.globl {name}
.p2align 8
.type {name},@function
{name}:
{body}
    s_endpgm
.section .rodata,"a"
.p2align 6
.amdhsa_kernel {name}
  .amdhsa_next_free_vgpr {vgpr}
  .amdhsa_next_free_sgpr {sgpr}
  .amdhsa_accum_offset {accum}
  .amdhsa_group_segment_fixed_size 0
  .amdhsa_kernarg_size {8*nargs}
  .amdhsa_user_sgpr_count 2
  .amdhsa_user_sgpr_kernarg_segment_ptr 1
  .amdhsa_system_sgpr_workgroup_id_x 1
.end_amdhsa_kernel
.amdgpu_metadata
---
amdhsa.version: [1, 2]
amdhsa.kernels:
  - .name: {name}
    .symbol: {name}.kd
    .kernarg_segment_size: {8*nargs}
    .kernarg_segment_align: 8
    .group_segment_fixed_size: 0
    .private_segment_fixed_size: 0
    .wavefront_size: 64
    .sgpr_count: {sgpr}
    .vgpr_count: {vgpr}
    .max_flat_workgroup_size: {wg}
    .args:
{args}
...
.end_amdgpu_metadata
"""
def build(name, text):
    open(name+".s","w").write(text)
    r=subprocess.run([f"{LLVM}/clang","-x","assembler","-target","amdgcn-amd-amdhsa","-mcpu=gfx950",name+".s","-o",name+".co"],capture_output=True,text=True)
    if r.returncode:
        print(r.stderr[:3000]); raise SystemExit(1)
STAMP0="""
    s_memrealtime s[80:81]
    s_memtime s[82:83]
"""
def stamp1(srd, wgreg="s2"):
    return f"""
    s_waitcnt vmcnt(0) lgkmcnt(0)
    s_barrier
    s_memrealtime s[84:85]
    s_memtime s[86:87]
    s_waitcnt lgkmcnt(0)
    v_mov_b32 v100, s80
    v_mov_b32 v101, s81
    v_mov_b32 v102, s84
    v_mov_b32 v103, s85
    v_mov_b32 v104, s82
    v_mov_b32 v105, s83
    v_mov_b32 v106, s86
    v_mov_b32 v107, s87
    s_lshl_b32 s88, {wgreg}, 5
    v_mov_b32 v108, s88
    v_cmp_eq_u32 vcc, 0, v0
    s_and_saveexec_b64 s[90:91], vcc
    s_cbranch_execz L_nostamp
    buffer_store_dwordx4 v[100:103], v108, s[{srd}:{srd+3}], 0 offen
    buffer_store_dwordx4 v[104:107], v108, s[{srd}:{srd+3}], 0 offen offset:16
    s_waitcnt vmcnt(0)
L_nostamp:
    s_mov_b64 exec, s[90:91]
"""
def srd(d, b, nbytes):
    return f"""
    s_mov_b32 s{d}, s{b}
    s_and_b32 s{d+1}, s{b+1}, 0xffff
    s_mov_b32 s{d+2}, {nbytes}
    s_mov_b32 s{d+3}, 0x00020000
"""
```

```python
from blib import *
def gen(name, D=2, sflag="", nst=7, every=16, mode="burst"):
    b=[]
    b.append("    s_load_dwordx2 s[4:5], s[0:1], 0\n    s_load_dwordx2 s[6:7], s[0:1], 8\n    s_load_dwordx2 s[16:17], s[0:1], 16")
    b.append("    s_waitcnt lgkmcnt(0)")
    b.append(srd(8,4,256<<20)); b.append(srd(12,16,1<<20)); b.append(srd(36,6,64<<20))
    b.append(f"""
    v_lshrrev_b32 v1, 6, v0
    s_nop 0
    v_readfirstlane_b32 s20, v1         ; wave
    v_and_b32 v4, 63, v0
    v_lshlrev_b32 v2, 4, v4
    """)
    b.append(STAMP0)
    b.append("    s_cmp_ge_u32 s20, 4\n    s_cbranch_scc1 L_P")
    b.append(f"""
    s_mul_i32 s22, s2, {4*4*8192}
    s_lshl_b32 s21, s20, 13
    s_add_u32 s22, s22, s21
    s_mov_b32 s23, 4
L_slot:
""")
    def st(i):
        b.append(f"    s_add_u32 s25, s22, {i*1024}")
        b.append(f"    buffer_store_dwordx4 v[8:11], v2, s[36:39], s25 offen{sflag}")
    if mode=="spread":
        for i in range(every):
            b.append("    s_barrier")
            if i%2==0 and i//2<nst: st(i//2)
    elif mode=="end":
        for i in range(every): b.append("    s_barrier")
        b.append("    s_cmp_lg_u32 s23, 1\n    s_cbranch_scc1 L_nost")
        for k in range(4):
            for i in range(nst): st(i)
            b.append(f"    s_sub_u32 s22, s22, {4*8192}")
        b.append("L_nost:")
    else:
        for i in range(every): b.append("    s_barrier")
        for i in range(nst): st(i)
    if mode!="same": b.append(f"    s_add_u32 s22, s22, {4*8192}")
    b.append("    s_sub_u32 s23, s23, 1\n    s_cmp_lg_u32 s23, 0\n    s_cbranch_scc1 L_slot")
    b.append("    s_branch L_end")
    b.append("L_P:\n    s_sub_u32 s20, s20, 4")
    tile=16384; NS=D+1
    b.append(f"""
    s_lshl_b32 s22, s2, 19
    s_lshl_b32 s21, s20, 11
    s_add_u32 s22, s22, s21
    s_lshl_b32 s24, s20, 12
""")
    offs=[0,1024,128<<20,(128<<20)+1024]; adv=8192
    def issue():
        s=[]
        for i in range(4):
            s.append(f"    s_add_u32 m0, s24, {i*1024}")
            s.append(f"    s_add_u32 s25, s22, {offs[i]}")
            s.append(f"    buffer_load_dwordx4 v2, s[8:11], s25 offen nt lds")
        s.append(f"    s_add_u32 s22, s22, {adv}")
        s.append(f"    s_add_u32 s24, s24, {tile}")
        s.append(f"    s_cmp_ge_u32 s24, {NS*tile}")
        s.append(f"    s_cselect_b32 s26, {NS*tile}, 0")
        s.append(f"    s_sub_u32 s24, s24, s26")
        return "\n".join(s)
    for d in range(D): b.append(issue())
    b.append(f"    s_mov_b32 s23, {64-D}")
    b.append("L_loopA:")
    b.append(issue())
    b.append(f"    s_waitcnt vmcnt({4*D})\n    s_barrier")
    b.append(f"    s_memrealtime s[92:93]\n    s_waitcnt lgkmcnt(0)\n    s_sub_u32 m0, {64-D}, s23\n    s_nop 0\n    v_writelane_b32 v50, s92, m0")
    b.append("    s_sub_u32 s23, s23, 1\n    s_cmp_lg_u32 s23, 0\n    s_cbranch_scc1 L_loopA")
    for d in range(D): b.append("    s_barrier")
    b.append("""
    s_cmp_lg_u32 s20, 0
    s_cbranch_scc1 L_nod
    s_lshl_b32 s94, s2, 8
    s_add_u32 s94, s94, 0x20000
    v_lshlrev_b32 v51, 2, v4
    buffer_store_dword v50, v51, s[12:15], s94 offen
L_nod:""")
    b.append("L_end:")
    b.append(stamp1(12))
    build(name, wrap(name,"\n".join(b),3,wg=512,vgpr=128))
    return NS*tile
if __name__=="__main__":
    out=[]
    for nm,kw in {"w_none":dict(nst=0),"w_def":dict(),"w_one":dict(nst=1),"w_same":dict(mode="same")}.items():
        l=gen(nm,**kw)
        out.append(f"echo {nm}; TL=1 ./drv9 {nm}.co {nm} 256 512 {max(l,65536)} 3 1 3 {256<<20} {64<<20} {1<<20} | tail -3")
    open("run9.sh","w").write("\n".join(out)+"\n")
```
